```python
import torch

def _softmax(x, axis=-1):
    return torch.softmax(x, dim=axis)
def _gelu(x):
    return torch.nn.functional.gelu(x, approximate="tanh")
def _silu(x):
    return torch.nn.functional.silu(x)
def _sigmoid(x):
    return torch.sigmoid(x)
def _layernorm(x, axis=-1, eps=1e-5):
    m = x.mean(dim=axis, keepdim=True)
    v = x.var(dim=axis, keepdim=True, unbiased=False)
    return (x - m) / torch.sqrt(v + eps)
def _scatter_add(tgt, idx, src, axis=0):
    return tgt.clone().index_add_(axis, idx, src)
def _segment_sum(src, seg, n):
    out = torch.zeros((n,) + src.shape[1:], dtype=src.dtype)
    return out.index_add_(0, seg, src)
def _pad(x, pw):
    flat = tuple(v for pair in reversed(pw) for v in pair)
    return torch.nn.functional.pad(x, flat)

kernel_name = 'gated_mix__softmax_full_mha__ssm_conv_h3__prompt'

def setup_inputs():

    _w = (lambda a: (lambda t: t.to(torch.bfloat16) if t.is_floating_point() else t)(torch.as_tensor(a)))
    def _A_setup():
        B, S, D = 1, 2048, 448
        return {
            "x": _w((lambda *s: torch.randn(*s, dtype=torch.bfloat16) * 0.05)(B, S, D)),
            "wqkv": _w((lambda *s: torch.randn(*s, dtype=torch.bfloat16) * 0.8)(D, 3 * D)),
            "wo": _w((lambda *s: torch.randn(*s, dtype=torch.bfloat16) * 0.05)(D, D)),
        }
    _A_in = _A_setup()

    def _B_setup():
        B, S, D = 1, 2048, 448
        ks = 4
        return {
            "q": _w((lambda *s: torch.randn(*s, dtype=torch.bfloat16) * 0.05)(B, S, D)),
            "k": _w((lambda *s: torch.randn(*s, dtype=torch.bfloat16) * 0.4)(B, S, D)),
            "v": _w((lambda *s: torch.randn(*s, dtype=torch.bfloat16) * 0.4)(B, S, D)),
            "shift_k": _w((lambda *s: torch.randn(*s, dtype=torch.bfloat16) * 0.4)(D, ks) * 0.5),
            "ssm_k": _w((lambda *s: torch.randn(*s, dtype=torch.bfloat16) * 0.8)(D, S) * (1.0 / S ** 0.5)),
            "ssm_D": _w((lambda *s: torch.randn(*s, dtype=torch.bfloat16) * 0.4)(D)),
        }
    _B_in = _B_setup()

    return {
        "A_x": _A_in["x"],
        "A_wqkv": _A_in["wqkv"],
        "A_wo": _A_in["wo"],
        "B_q": _B_in["q"],
        "B_k": _B_in["k"],
        "B_v": _B_in["v"],
        "B_shift_k": _B_in["shift_k"],
        "B_ssm_k": _B_in["ssm_k"],
        "B_ssm_D": _B_in["ssm_D"],
        "gate_w": _w((lambda *s: torch.randn(*s, dtype=torch.bfloat16) * 0.05)(448) * 16.0),
    }

def reference(A_x, A_wqkv, A_wo, B_q, B_k, B_v, B_shift_k, B_ssm_k, B_ssm_D, gate_w):
    def _A_ref(x, wqkv, wo):
        B, S, D = x.shape
        H = 16; Dh = D // H
        qkv = (lambda x, *d: x.permute(*d))((x @ wqkv).reshape(B, S, 3, H, Dh), 2, 0, 3, 1, 4)
        q, k, v = qkv[0], qkv[1], qkv[2]
        scale = Dh ** -0.5
        scores = torch.einsum("bhqd,bhkd->bhqk", q, k) * scale
        p = _softmax(scores, axis=-1)
        o = torch.einsum("bhqk,bhkd->bhqd", p, v)
        return (lambda x, *d: x.permute(*d))(o, 0, 2, 1, 3).reshape(B, S, D) @ wo

    def _B_ref(q, k, v, shift_k, ssm_k, ssm_D):
        B, S, D = q.shape
        ks = shift_k.shape[-1]
        k_pad = _pad(k, ((0, 0), (ks - 1, 0), (0, 0)))
        k_shift = torch.zeros_like(k)
        for t in range(ks):
            k_shift = k_shift + k_pad[:, t:t + S, :] * shift_k[:, ks - 1 - t][None, None, :]
        kv = k_shift * v
        L = 2 * S
        kv_pad = _pad(kv, ((0, 0), (0, S), (0, 0)))
        kf_pad = _pad(ssm_k, ((0, 0), (0, S)))
        kv_f = (lambda x, axes=(-2,-1): torch.fft.rfft2(x.float(), dim=axes))(kv_pad[:, None, :, :], axes=(1, 2))
        kf_f = (lambda x, axes=(-2,-1): torch.fft.rfft2(x.float(), dim=axes))(kf_pad[:, None, :], axes=(1, 2))
        kf_f = (lambda x, *d: x.permute(*d))(kf_f, 1, 2, 0)
        y_f = kv_f * kf_f[None, :, :, :]
        y = (lambda x, s, axes=(-2,-1): torch.fft.irfft2(x, s=s, dim=axes).to(torch.bfloat16))(y_f, (1, L), axes=(1, 2))[:, 0, :S, :]
        y = y + kv * ssm_D[None, None, :]
        return q * y

    x = A_x
    g = _sigmoid((x * gate_w).sum(-1, keepdims=True))
    a = _A_ref(x, A_wqkv, A_wo)
    b = _B_ref(x, B_k, B_v, B_shift_k, B_ssm_k, B_ssm_D)
    return g * a + (1 - g) * b
```

```python
import re

class Asm:
    def __init__(self):
        self.lines = []
        self._uid = 0
    def __call__(self, s):
        for l in s.strip("\n").split("\n"):
            l = l.strip()
            if l: self.lines.append(l)
    def label(self, name): self.lines.append(name + ":")
    def uid(self, p="L"):
        self._uid += 1
        return f"{p}_{self._uid}"
    def nop(self, n):
        while n > 0:
            k = min(n, 16)
            self.lines.append(f"s_nop {k-1}")
            n -= k
    def text(self): return "\n".join(self.lines)

def vr(a, n=1):
    return f"v{a}" if n == 1 else f"v[{a}:{a+n-1}]"
def sr(a, n=1):
    return f"s{a}" if n == 1 else f"s[{a}:{a+n-1}]"

REG = re.compile(r"^(-|\|)?(abs\()?([vsa])(\d+|\[(\d+):(\d+)\])\)?\|?$")
def regs_of(tok):
    tok = tok.strip()
    if tok in ("vcc",): return [("s", "vcc")]
    if tok == "vcc_lo" or tok == "vcc_hi": return [("s", "vcc")]
    if tok == "exec": return [("s", "exec")]
    if tok == "m0": return [("s", "m0")]
    m = REG.match(tok)
    if not m: return []
    k = m.group(3)
    if m.group(5) is not None:
        return [(k, i) for i in range(int(m.group(5)), int(m.group(6)) + 1)]
    return [(k, int(m.group(4)))]

TRANS = ("v_exp_f32", "v_log_f32", "v_rcp_f32", "v_rsq_f32", "v_sqrt_f32", "v_sin_f32", "v_cos_f32", "v_rcp_iflag_f32", "v_exp_f16")
class I:
    def __init__(self, line):
        self.line = line
        body = line.split(";")[0].strip()
        parts = body.split(None, 1)
        self.op = parts[0]
        ops = []
        if len(parts) > 1:
            rest = parts[1]
            ops = [t.strip() for t in re.split(r",(?![^\[]*\])", rest)]
            last = ops[-1].split()
            self.mods = last[1:]
            ops[-1] = last[0] if last else ""
        else:
            self.mods = []
        self.ops = ops
        op = self.op
        self.kind = ("mfma" if op.startswith("v_mfma") else "valu" if op.startswith("v_") else
                     "ds" if op.startswith("ds_") else
                     "vmem" if op.startswith(("buffer_", "global_", "flat_")) else "salu")
        self.dst = []; self.src = []; self.srcA = []; self.srcB = []; self.srcC = []
        self.states = 1
        if op == "s_nop": self.states = int(ops[0], 0) + 1
        R = regs_of
        if self.kind == "mfma":
            self.dst = R(ops[0]); self.srcA = R(ops[1]); self.srcB = R(ops[2]); self.srcC = R(ops[3])
            self.src = self.srcA + self.srcB + self.srcC
            self.passes = 8 if "32x32" in op else 4
        elif self.kind == "valu":
            if op.startswith("v_cmpx"):
                self.dst = R(ops[0]) + [("s", "exec")]; self.src = sum((R(o) for o in ops[1:]), [])
            elif op.startswith("v_cmp"):
                self.dst = R(ops[0]); self.src = sum((R(o) for o in ops[1:]), [])
            elif op.startswith("v_permlane32_swap") or op.startswith("v_permlane16_swap"):
                self.dst = R(ops[0]) + R(ops[1]); self.src = R(ops[0]) + R(ops[1])
            elif op in ("v_add_co_u32", "v_sub_co_u32", "v_addc_co_u32", "v_subb_co_u32") or op.startswith(("v_add_co_u32", "v_addc_co_u32")):
                self.dst = R(ops[0]) + R(ops[1]); self.src = sum((R(o) for o in ops[2:]), [])
            else:
                self.dst = R(ops[0]); self.src = sum((R(o) for o in ops[1:]), [])
                if op.startswith(("v_fmac", "v_dot2c", "v_pk_fmac", "v_writelane")) or "UNUSED_PRESERVE" in " ".join(self.mods) or "_d16" in op:
                    self.src += R(ops[0])
                if op.startswith("v_cndmask") and len(ops) == 3: self.src += [("s", "vcc")]
        elif self.kind == "ds":
            if op.startswith(("ds_read", "ds_bpermute", "ds_permute", "ds_swizzle")):
                self.dst = R(ops[0]); self.src = sum((R(o) for o in ops[1:]), [])
            else:
                self.src = sum((R(o) for o in ops), [])
        elif self.kind == "vmem":
            lds = "lds" in self.mods
            if op.startswith("buffer_load") and not lds:
                self.dst = R(ops[0]); self.src = sum((R(o) for o in ops[1:]), [])
            elif op.startswith("global_load") and not op.startswith("global_load_lds"):
                self.dst = R(ops[0]); self.src = sum((R(o) for o in ops[1:]), [])
            else:
                self.src = sum((R(o) for o in ops), [])
                if lds or op.startswith("global_load_lds"): self.src += [("s", "m0")]
            self.is_lds = lds
            self.store_data = []
            if op.startswith("buffer_store"): self.store_data = R(ops[0])
            if op.startswith("global_store"): self.store_data = R(ops[1])
        else:
            if op.startswith(("s_cmp", "s_cbranch", "s_branch", "s_waitcnt", "s_barrier", "s_nop", "s_endpgm", "s_sleep", "s_setprio")):
                self.src = sum((R(o) for o in ops), [])
            else:
                self.dst = R(ops[0]) if ops else []
                self.src = sum((R(o) for o in ops[1:]), [])
                if "saveexec" in op: self.dst += [("s", "exec")]
        self.dpp = any(m.startswith(("row_", "quad_perm", "wave_")) for m in self.mods)
        self.trans = op.replace("_e32", "").replace("_e64", "") in TRANS
        nomod = " ".join(self.mods)
        self.opsel_dst = ("dst_sel" in nomod and "dst_sel:DWORD" not in nomod)

def need(p, c):
    best = (0, "")
    def up(n, why):
        nonlocal best
        if n > best[0]: best = (n, why)
    pd = set(p.dst); cs = set(c.src); cd = set(c.dst)
    vpd = {r for r in pd if r[0] in "va"}
    spd = {r for r in pd if r[0] == "s"}
    if p.kind == "valu":
        if c.kind == "mfma" and vpd & cs: up(2, "VALU->MFMA src")
        if c.kind == "valu" and c.dpp and vpd & cs: up(2, "VALU->DPP")
        if c.kind == "valu" and c.op.startswith("v_permlane") and vpd & cs: up(2, "VALU->permlane")
        if c.op.startswith(("v_readlane", "v_readfirstlane")) and vpd & cs: up(1, "VALU->readlane")
        if p.trans and c.kind == "valu" and not c.trans and vpd & cs: up(1, "trans->VALU")
        if p.trans and c.kind == "mfma" and vpd & cs: up(2, "trans->mfma")
        if p.opsel_dst and c.kind == "valu" and vpd & (cs | cd): up(1, "opsel/sdwa dst")
        sp = {r for r in spd if r[1] != "exec"}
        if c.kind == "vmem" and sp & cs: up(5, "VALU sgpr->VMEM")
        if c.kind == "valu" and sp & cs:
            up(4 if c.op.startswith(("v_readlane", "v_writelane")) else 2, "VALU sgpr->VALU")
        if ("s", "exec") in spd:
            if c.kind == "mfma": up(4, "VALU exec->MFMA")
            if c.dpp: up(5, "VALU exec->DPP")
            if c.op.startswith(("v_readlane", "v_readfirstlane", "v_writelane", "v_permlane")): up(4, "cmpx->readlane")
    if p.kind == "salu" and ("s", "m0") in spd and c.kind == "vmem" and ("s", "m0") in cs: up(1, "M0->lds dma")
    if p.kind == "mfma":
        ps = p.passes
        if c.kind == "mfma":
            if vpd & set(c.srcC):
                if set(c.srcC) == vpd and c.passes == ps: pass
                else: up({4: 6, 8: 10}[ps], "MFMA D->MFMA C overlap")
            if vpd & (set(c.srcA) | set(c.srcB)): up({4: 8, 8: 12}[ps], "MFMA D->MFMA A/B")
            if vpd & cd and not (set(c.srcC) == vpd):
                up({4: 6, 8: 10}[ps], "MFMA D->MFMA D WAW (conservative)")
        else:
            if vpd & (cs | cd) and c.kind in ("valu", "ds", "vmem"): up({4: 8, 8: 12}[ps], "MFMA D->VALU/mem")
        if c.kind == "valu" and set(p.srcC) & cd: up({4: 3, 8: 7}[ps], "MFMA C WAR")
    if p.kind == "vmem" and len(getattr(p, "store_data", [])) >= 3:
        sd = set(p.store_data)
        if sd & cd: up(2 if c.kind in ("valu", "mfma") else 1, "store data WAR")
    return best

def check_linear(instrs, tag=""):
    probs = []
    n = len(instrs)
    for i, p in enumerate(instrs):
        if p.kind == "salu" and not p.dst: continue
        dist = 0
        for j in range(i + 1, min(n, i + 24)):
            c = instrs[j]
            k, why = need(p, c)
            if k > dist:
                probs.append(f"{tag}: need {k} have {dist} ({why}):\n    {p.line}\n    {c.line}")
            dist += c.states
            if dist >= 20: break
    return probs

def check_hazards(lines):
    ins = []; labels = {}
    for l in lines:
        s = l.split(";")[0].strip()
        if not s or s.startswith("."): continue
        if s.endswith(":"):
            labels[s[:-1]] = len(ins); continue
        ins.append(I(s))
    probs = []
    seg = []
    for x in ins:
        seg.append(x)
        if x.op in ("s_endpgm", "s_branch", "s_setpc_b64"):
            probs += check_linear(seg, "lin"); seg = []
    probs += check_linear(seg, "lin")
    for i, x in enumerate(ins):
        if x.op.startswith(("s_cbranch", "s_branch")):
            t = x.ops[0]
            if t in labels:
                j = labels[t]
                a = i
                while a > 0 and i - a < 24 and ins[a-1].op not in ("s_endpgm", "s_branch"): a -= 1
                win = ins[a:i + 1] + ins[j:j + 24]
                nb = i + 1 - a
                for pi in range(nb):
                    p = win[pi]; dist = 0
                    for ci in range(pi + 1, len(win)):
                        c = win[ci]
                        if ci >= nb:
                            k, why = need(p, c)
                            if k > dist: probs.append(f"br->{t}: need {k} have {dist} ({why}):\n    {p.line}\n    {c.line}")
                        if c.op in ("s_endpgm",) or (c.op == "s_branch" and ci >= nb): break
                        dist += c.states
                        if dist >= 20: break
    return probs

def descriptor(name, vgpr, sgpr=96, accum=None, wgy=False):
    accum = accum or ((vgpr + 3) // 4 * 4)
    return f""".p2align 6
.amdhsa_kernel {name}
  .amdhsa_next_free_vgpr {vgpr}
  .amdhsa_next_free_sgpr {sgpr}
  .amdhsa_accum_offset {accum}
  .amdhsa_group_segment_fixed_size 0
  .amdhsa_kernarg_size 104
  .amdhsa_user_sgpr_count 2
  .amdhsa_user_sgpr_kernarg_segment_ptr 1
  .amdhsa_system_sgpr_workgroup_id_x 1
  .amdhsa_float_denorm_mode_32 3
.end_amdhsa_kernel"""
```

```python
from asmlib import *
S_LEN = 2048; D = 448; H = 16; DH = 28
WS_QF  = 0x000000
WS_KVF = 0x200000
WS_UR  = 0x600000
WS_Y2  = 0x800000
WS_OF  = 0xA00000
WS_G   = 0xC00000
WS_SIZE = 0x10000000
P_X, P_WQKV, P_WO, P_Q, P_K, P_V, P_SHIFT, P_SSMK = 36, 38, 40, 42, 44, 46, 48, 50
P_SSMD, P_GATEW, P_OUT, P_DBG, P_WS = 52, 54, 56, 58, 60
QSCALE = 28 ** -0.5 * 1.4426950408889634

def f2u(f):
    import struct
    return struct.unpack("<I", struct.pack("<f", f))[0]

def load_kernargs(a):
    a("s_load_dwordx16 s[36:51], s[0:1], 0")
    a("s_load_dwordx8 s[52:59], s[0:1], 64")
    a("s_load_dwordx2 s[60:61], s[0:1], 96")

def srd(a, dst, ptr, size):
    a(f"s_mov_b64 s[{dst}:{dst+1}], s[{ptr}:{ptr+1}]")
    a(f"s_mov_b32 s{dst+2}, {size:#x}")
    a(f"s_mov_b32 s{dst+3}, 0x20000")

def kernel_head(a, name):
    a(f".globl {name}")
    a(".p2align 8")
    a(f".type {name},@function")
    a.label(name)
```

```python
from common import *

CB = 65536
HC = 4160
CH = 4 * HC + 4608
URO = 4 * HC
CRED = CB + 2 * CH
assert CRED + 16384 <= 131072
import os
VARIANT = os.environ.get('CV', '')
JSETS = ([0, 3, 4, 7], [1, 2, 5, 6])

def emit_conv(a, L, base=CB):
    cred = base + 2 * CH
    a("s_cmp_ge_u32 s2, 224")
    a(f"s_cbranch_scc1 {L('conv_end')}")
    a("s_lshr_b32 s7, s4, 2")
    a("s_lshl_b32 s24, s2, 1")
    a("s_add_u32 s24, s24, s7")
    a(f"s_mul_i32 s25, s7, {CH}")
    a(f"s_add_u32 s25, s25, {base}")
    a("s_and_b32 s26, s4, 3")
    a("s_lshl_b32 s27, s24, 12")
    a(f"s_add_u32 s28, s{P_SSMK}, s27")
    a(f"s_addc_u32 s29, s{P_SSMK+1}, 0")
    a("s_mov_b32 s30, 4096")
    a("s_mov_b32 s31, 0x20000")
    a("s_and_b32 s32, s24, 0xfffffffe")
    a("s_lshl_b32 s32, s32, 1")
    a(f"s_load_dword s33, s[{P_SSMD}:{P_SSMD+1}], s32")
    a("s_lshl_b32 s34, s26, 10")
    a("s_add_u32 s35, s27, s34")
    a(f"s_add_u32 s35, s35, {WS_UR}")
    a("s_add_u32 s34, s34, s25")
    a(f"s_add_u32 m0, s34, {URO}")
    a("s_nop 0")
    a("buffer_load_dwordx4 v1, s[16:19], s35 offen lds")
    a("s_lshl_b32 s34, s26, 10")
    a("v_add_u32 v2, s34, v1")
    a("buffer_load_dwordx4 v[16:19], v2, s[28:31], 0 offen")
    a("buffer_load_dwordx2 v[20:21], v2, s[28:31], 0 offen offset:16")
    a("v_subrev_u32 v3, 32, v1")
    a("v_subrev_u32 v4, 16, v1")
    a("buffer_load_dwordx4 v[24:27], v3, s[28:31], 0 offen")
    a("buffer_load_dwordx2 v[28:29], v4, s[28:31], 0 offen")
    a("v_mov_b32 v32, 0\nv_mov_b32 v33, 0\nv_mov_b32 v34, 0\nv_mov_b32 v35, 0")
    a(f"s_add_u32 s34, s25, {URO + 4096}")
    a("v_add_u32 v5, s34, v1")
    a("v_cmp_gt_u32 vcc, 30, v0")
    a("s_and_saveexec_b64 s[62:63], vcc")
    a("ds_write_b128 v5, v[32:35]")
    a("s_mov_b64 exec, s[62:63]")
    def shifted(src, dstaddr):
        a(f"ds_write_b128 v{dstaddr}, {vr(src,4)}")
        for j in range(4): a(f"v_alignbit_b32 v{36+j}, v{src+j+1}, v{src+j}, 16")
        a(f"ds_write_b128 v{dstaddr}, v[36:39] offset:{HC}")
        for j in range(4): a(f"v_mov_b32 v{40+j}, v{src+j+1}")
        a(f"ds_write_b128 v{dstaddr}, v[40:43] offset:{2*HC}")
        for j in range(4): a(f"v_alignbit_b32 v{44+j}, v{src+j+2}, v{src+j+1}, 16")
        a(f"ds_write_b128 v{dstaddr}, v[44:47] offset:{3*HC}")
    a("s_add_u32 s34, s25, 32")
    a("v_add_u32 v6, s34, v2")
    a("s_waitcnt vmcnt(2)")
    shifted(16, 6)
    a("s_cmp_lg_u32 s26, 0")
    a(f"s_cbranch_scc1 {L('conv_nolead')}")
    a("v_add_u32 v6, s25, v1")
    a("s_waitcnt vmcnt(0)")
    a("v_cmp_gt_u32 vcc, 2, v0")
    a("s_and_saveexec_b64 s[62:63], vcc")
    shifted(24, 6)
    a("s_mov_b64 exec, s[62:63]")
    a.label(L("conv_nolead"))
    a("v_and_b32 v2, 15, v0")
    a("v_lshrrev_b32 v3, 4, v0")
    a("v_add_u32 v4, 1, v2")
    a("v_and_b32 v5, 3, v4")
    a("v_sub_u32 v4, v4, v5")
    a("v_lshl_add_u32 v4, v3, 3, v4")
    a("v_lshlrev_b32 v4, 1, v4")
    a(f"v_mul_u32_u24 v5, {HC}, v5")
    a("v_add_u32 v4, v4, v5")
    a("s_bfe_u32 s34, s4, 0x10001")
    a("s_lshl_b32 s35, s34, 8")
    a("s_add_u32 s36, s35, s25")
    a("v_add_u32 v6, s36, v4")
    a("v_lshlrev_b32 v4, 5, v2")
    a("v_lshlrev_b32 v5, 4, v3")
    a("v_sub_u32 v4, v5, v4")
    a(f"s_add_u32 s36, s36, {URO + 480}")
    a("v_add_u32 v7, s36, v4")
    AC = 16; AF = 32; BF = 64
    a("s_waitcnt vmcnt(0) lgkmcnt(0)")
    for r in range(16): a(f"v_mov_b32 v{AC+r}, 0")
    a("s_barrier")
    a("s_mov_b32 s35, 4")
    a("s_and_b32 s36, s4, 1")
    a.label(L("conv_loop"))
    for i in range(8):
        a(f"ds_read_b64 {vr(AF+4*i,2)}, v6 offset:{512*i}")
        a(f"ds_read_b64 {vr(AF+4*i+2,2)}, v6 offset:{512*i+8}")
        a(f"ds_read_b128 {vr(BF+4*i,4)}, v7 offset:{(7-i)*512}")
        if VARIANT == "A" and i in (3,): a("s_waitcnt lgkmcnt(0)")
    a("v_add_u32 v6, 64, v6")
    a("v_add_u32 v7, 64, v7")
    a("s_cmp_eq_u32 s36, 1")
    a("s_waitcnt lgkmcnt(0)")
    a(f"s_cbranch_scc1 {L('conv_js1')}")
    def block(js):
        prods = []
        for idx, J in enumerate(JSETS[js]):
            for i in range(J + 1): prods.append((idx, i, J - i))
        prods.sort(key=lambda t: (t[1], -t[0]))
        for idx, i, dd in prods:
            a(f"v_mfma_f32_16x16x32_bf16 {vr(AC+4*idx,4)}, {vr(AF+4*i,4)}, {vr(BF+4*dd,4)}, {vr(AC+4*idx,4)}")
    block(0)
    a(f"s_branch {L('conv_join')}")
    a.label(L("conv_js1"))
    block(1)
    a.label(L("conv_join"))
    if VARIANT == "B":
        for _ in range(4): a("s_nop 15")
    a("s_sub_u32 s35, s35, 1")
    a("s_cmp_lg_u32 s35, 0")
    a(f"s_cbranch_scc1 {L('conv_loop')}")
    a("s_lshl_b32 s35, s4, 11")
    a(f"s_add_u32 s35, s35, {cred}")
    a("v_add_u32 v4, s35, v1")
    a("s_xor_b32 s35, s4, 2")
    a("s_lshl_b32 s35, s35, 11")
    a(f"s_add_u32 s35, s35, {cred}")
    a("v_add_u32 v5, s35, v1")
    a("s_cmp_eq_u32 s34, 1")
    a("s_nop 4")
    a(f"s_cbranch_scc1 {L('conv_rh1')}")
    a(f"ds_write_b128 v4, v[{AC+8}:{AC+11}]")
    a(f"ds_write_b128 v4, v[{AC+12}:{AC+15}] offset:1024")
    a(f"s_branch {L('conv_rhj')}")
    a.label(L("conv_rh1"))
    a(f"ds_write_b128 v4, v[{AC}:{AC+3}]")
    a(f"ds_write_b128 v4, v[{AC+4}:{AC+7}] offset:1024")
    for r in range(8): a(f"v_mov_b32 v{AC+r}, v{AC+8+r}")
    a.label(L("conv_rhj"))
    a("s_lshl_b32 s62, s34, 2")
    a("s_add_u32 s63, s62, s36")
    a("s_sub_u32 s35, 3, s36")
    a("s_add_u32 s62, s62, s35")
    a("v_lshlrev_b32 v6, 5, v2")
    a("v_lshl_add_u32 v6, v3, 3, v6")
    a(f"s_add_u32 s35, s25, {URO + 4088}")
    a("v_sub_u32 v7, s35, v6")
    a("s_lshl_b32 s63, s63, 9")
    a("s_lshl_b32 s62, s62, 9")
    a("v_subrev_u32 v36, s63, v7")
    a("v_subrev_u32 v37, s62, v7")
    a("s_waitcnt lgkmcnt(0)")
    a("s_barrier")
    a("ds_read_b128 v[40:43], v5")
    a("ds_read_b128 v[44:47], v5 offset:1024")
    a("ds_read_b64 v[48:49], v36")
    a("ds_read_b64 v[50:51], v37")
    a("s_bitcmp1_b32 s24, 0")
    a("s_cselect_b32 s35, 0, 16")
    a("s_lshl_b32 s33, s33, s35")
    a("s_and_b32 s33, s33, 0xffff0000")
    a(f"s_add_u32 s27, s27, {WS_Y2}")
    a("s_add_u32 s63, s63, s27")
    a("s_add_u32 s62, s62, s27")
    a("s_waitcnt lgkmcnt(0)")
    for t in range(2):
        for r in range(4):
            a(f"v_add_f32 v{AC+4*t+r}, v{AC+4*t+r}, v{40+4*t+r}")
        u = 48 + 2 * t
        a(f"v_and_b32 v52, 0xffff0000, v{u+1}")
        a(f"v_lshlrev_b32 v53, 16, v{u+1}")
        a(f"v_and_b32 v54, 0xffff0000, v{u}")
        a(f"v_lshlrev_b32 v55, 16, v{u}")
        for r in range(4):
            a(f"v_fmac_f32 v{AC+4*t+r}, s33, v{52+r}")
        a(f"v_cvt_pk_bf16_f32 v{56+2*t}, v{AC+4*t}, v{AC+4*t+1}")
        a(f"v_cvt_pk_bf16_f32 v{57+2*t}, v{AC+4*t+2}, v{AC+4*t+3}")
    a("buffer_store_dwordx2 v[56:57], v6, s[16:19], s63 offen sc1")
    a("buffer_store_dwordx2 v[58:59], v6, s[16:19], s62 offen sc1")
    a("s_barrier")
    a.label(L("conv_end"))
```

```python
from common import *

LDS_X = 0
LDS_W = 65536
LDS_T = 151552
K1_LDS = 159744

def emit_k1(a, name="k1_kernel"):
    kernel_head(a, name)
    L = lambda s: f"{name}_{s}"
    a("s_cmp_ge_u32 s2, 256")
    a(f"s_cbranch_scc1 {L('end')}")
    load_kernargs(a)
    a("v_lshrrev_b32 v1, 6, v0")
    a("v_and_b32 v0, 63, v0")
    a("v_readfirstlane_b32 s4, v1")
    a("s_and_b32 s5, s2, 1")
    a("s_lshl_b32 s5, s5, 3")
    a("s_bfe_u32 s6, s2, 0x30003")
    a("s_add_u32 s5, s5, s6")
    a("s_bfe_u32 s6, s2, 0x20001")
    a("s_lshl_b32 s6, s6, 2")
    a("s_lshr_b32 s7, s2, 6")
    a("s_add_u32 s6, s6, s7")
    a("s_waitcnt lgkmcnt(0)")
    srd(a, 8, P_X, S_LEN * D * 2)
    srd(a, 16, P_WS, WS_SIZE)
    a("s_cmp_ge_u32 s4, 4")
    a(f"s_cbranch_scc1 {L('side')}")
    srd(a, 12, P_WQKV, D * 3 * D * 2)
    a("s_setprio 1")
    vXe, vXo, vWd = 2, 3, 4
    a("v_lshrrev_b32 v5, 3, v0")
    a("v_mul_u32_u24 v5, 896, v5")
    a("v_and_b32 v6, 7, v0")
    a("v_lshrrev_b32 v7, 4, v0")
    a("v_xor_b32 v8, v6, v7")
    a(f"v_lshl_add_u32 v{vXe}, v8, 4, v5")
    a("v_xor_b32 v8, 4, v8")
    a(f"v_lshl_add_u32 v{vXo}, v8, 4, v5")
    a("v_lshrrev_b32 v5, 2, v0")
    a("v_mul_u32_u24 v5, 2688, v5")
    a("v_and_b32 v6, 3, v0")
    a(f"v_lshl_add_u32 v{vWd}, v6, 4, v5")
    a("s_lshl_b32 s20, s6, 7")
    a("s_lshl_b32 s7, s4, 5")
    a("s_add_u32 s20, s20, s7")
    a("s_mul_i32 s20, s20, 896")
    a(f"s_mul_i32 s21, s4, {16*2688}")
    a("s_mul_i32 s7, s5, 56")
    a("s_add_u32 s21, s21, s7")
    a("s_lshl_b32 s22, s4, 12")
    a("s_lshl_b32 s23, s4, 10")
    a(f"s_add_u32 s23, s23, {LDS_W}")
    def dma_chunk(sx_glob, sx_lds, sw_glob, sw_lds):
        for i in range(4):
            if i == 0:
                a(f"s_mov_b32 m0, s{sx_lds}")
                a("s_nop 0")
                so = sx_glob
            else:
                a(f"s_add_u32 m0, s{sx_lds}, {i*1024}")
                a(f"s_add_u32 s30, s{sx_glob}, {i*8*896}")
                so = 30
            a(f"buffer_load_dwordx4 v{vXe if i % 2 == 0 else vXo}, s[8:11], s{so} offen lds")
        for seg in range(3):
            if seg == 0:
                a(f"s_mov_b32 m0, s{sw_lds}")
                a("s_nop 0")
                so = sw_glob
            else:
                a(f"s_add_u32 m0, s{sw_lds}, {seg*28672}")
                a(f"s_add_u32 s31, s{sw_glob}, {seg*896}")
                so = 31
            a(f"buffer_load_dwordx4 v{vWd}, s[12:15], s{so} offen lds")
    a("s_mov_b32 s24, s20")
    a("s_mov_b32 s25, s22")
    a("s_mov_b32 s26, s21")
    a("s_mov_b32 s27, s23")
    def adv():
        a("s_add_u32 s24, s24, 128")
        a("s_add_u32 s25, s25, 16384")
        a("s_and_b32 s25, s25, 0xffff")
        a(f"s_add_u32 s26, s26, {64*2688}")
        a("s_add_u32 s27, s27, 4096")
    for c in range(4):
        dma_chunk(24, 25, 26, 27)
        adv()
    a("s_mov_b32 s28, 4")
    vXa = [10, 11, 12, 13]; vWa = 14
    a("v_and_b32 v5, 31, v0")
    a("v_lshrrev_b32 v6, 5, v0")
    a("v_bfe_u32 v7, v0, 1, 3")
    a("v_xor_b32 v7, v6, v7")
    a("v_lshlrev_b32 v8, 7, v5")
    a(f"v_add_u32 v8, s22, v8")
    for s in range(4):
        a(f"v_xor_b32 v9, {2*s}, v7")
        a(f"v_lshl_add_u32 v{vXa[s]}, v9, 4, v8")
    a("v_bfe_u32 v5, v0, 2, 2")
    a("v_lshl_add_u32 v5, v6, 3, v5")
    a("v_lshlrev_b32 v5, 6, v5")
    a("v_bfe_u32 v7, v0, 4, 1")
    a("v_lshl_add_u32 v5, v7, 5, v5")
    a("v_and_b32 v7, 3, v0")
    a("v_lshl_add_u32 v5, v7, 3, v5")
    a(f"v_add_u32 v{vWa}, {LDS_W}, v5")
    XB = [16, 20]; WBf = [24, 36]
    AQ, AK, AV = 64, 80, 96
    def reads(s, buf):
        a(f"ds_read_b128 {vr(XB[buf],4)}, v{vXa[s]}")
        for seg in range(3):
            for half in range(2):
                a(f"ds_read_b64_tr_b16 {vr(WBf[buf]+4*seg+2*half,2)}, v{vWa} offset:{seg*28672 + s*1024 + half*256}")
    def mfmas(buf, first=False):
        x = vr(XB[buf], 4)
        wq, wk, wv = (vr(WBf[buf] + 4*i, 4) for i in range(3))
        a(f"v_mfma_f32_32x32x16_bf16 {vr(AK,16)}, {wk}, {x}, {vr(AK,16)}")
        a(f"v_mfma_f32_32x32x16_bf16 {vr(AV,16)}, {x}, {wv}, {vr(AV,16)}")
        a(f"v_mfma_f32_32x32x16_bf16 {vr(AQ,16)}, {wq}, {x}, {vr(AQ,16)}")
    for r in range(AQ, AQ + 48): a(f"v_mov_b32 v{r}, 0")
    a("s_waitcnt vmcnt(21)")
    a("s_barrier")
    reads(0, 0)
    a("s_mov_b32 s29, 7")
    a.label(L("loop"))
    for s in range(4):
        buf = s & 1
        if s < 3:
            reads(s + 1, buf ^ 1)
        else:
            a("s_waitcnt vmcnt(14)")
            a("s_barrier")
            for t in range(4):
                a(f"v_add_u32 v{vXa[t]}, 16384, v{vXa[t]}")
                a(f"v_and_b32 v{vXa[t]}, 0xffff, v{vXa[t]}")
            a(f"v_add_u32 v{vWa}, 4096, v{vWa}")
            reads(0, buf ^ 1)
        a("s_waitcnt lgkmcnt(7)")
        mfmas(buf)
        if s == 2:
            pass
        if s == 3:
            a("s_cmp_ge_u32 s28, 7")
            a("s_cselect_b32 s32, 0x40000000, 0")
            a("s_add_u32 s33, s24, s32")
            a("s_add_u32 s34, s26, s32")
            a("s_cmp_ge_u32 s28, 7")
            a("s_cselect_b32 s32, 28672, 0")
            a("s_sub_u32 s35, s27, s32")
            dma_chunk(33, 25, 34, 35)
            adv()
            a("s_add_u32 s28, s28, 1")
    a("s_sub_u32 s29, s29, 1")
    a("s_cmp_lg_u32 s29, 0")
    a(f"s_cbranch_scc1 {L('loop')}")
    a("s_waitcnt lgkmcnt(0)")
    a("s_lshl_b32 s7, s6, 2")
    a("s_add_u32 s7, s7, s4")
    a("s_lshl_b32 s30, s5, 6")
    a("s_add_u32 s30, s30, s7")
    a("s_lshl_b32 s31, s30, 11")
    a(f"s_add_u32 s31, s31, {WS_QF}")
    a("s_lshl_b32 s30, s30, 12")
    a(f"s_add_u32 s30, s30, {WS_KVF}")
    a("v_lshlrev_b32 v1, 4, v0")
    a("v_cmp_gt_u32 vcc, 32, v0")
    a(f"s_mov_b32 s32, {f2u(QSCALE):#x}")
    a("s_nop 7")
    for r, val in zip(range(12, 16), ("1.0", "1.0", "1.0", "0")):
        a(f"v_cndmask_b32 v{AK+r}, {val}, v{AK+r}, vcc")
    for j in range(8):
        a(f"v_cvt_pk_bf16_f32 v{16+j}, v{AK+2*j}, v{AK+2*j+1}")
    a(f"buffer_store_dwordx4 v[16:19], v1, s[16:19], s30 offen sc1")
    a(f"buffer_store_dwordx4 v[20:23], v1, s[16:19], s30 offen offset:1024 sc1")
    a("v_and_b32 v5, 31, v0")
    a("v_cmp_gt_u32 vcc, 28, v5")
    a("v_cmp_eq_u32 s[34:35], 28, v5")
    a("v_mov_b32 v6, 0")
    a("v_mov_b32 v7, 0x3f803f80")
    a("v_cndmask_b32 v6, v6, v7, s[34:35]")
    for j in range(8):
        a(f"v_cvt_pk_bf16_f32 v{24+j}, v{AV+2*j}, v{AV+2*j+1}")
    for j in range(8):
        a(f"v_cndmask_b32 v{24+j}, v6, v{24+j}, vcc")
    a(f"buffer_store_dwordx4 v[24:27], v1, s[16:19], s30 offen offset:2048 sc1")
    a(f"buffer_store_dwordx4 v[28:31], v1, s[16:19], s30 offen offset:3072 sc1")
    a("v_cmp_gt_u32 vcc, 32, v0")
    for r in range(16):
        a(f"v_mul_f32 v{AQ+r}, s32, v{AQ+r}")
    for r in range(12, 16):
        a(f"v_cndmask_b32 v{AQ+r}, 0, v{AQ+r}, vcc")
    for j in range(8):
        a(f"v_cvt_pk_bf16_f32 v{32+j}, v{AQ+2*j}, v{AQ+2*j+1}")
    a(f"buffer_store_dwordx4 v[32:35], v1, s[16:19], s31 offen sc1")
    a(f"buffer_store_dwordx4 v[36:39], v1, s[16:19], s31 offen offset:1024 sc1")
    a("s_endpgm")
    a.label(L("side"))
    emit_side(a, name)
    a.label(L("end"))
    a("s_endpgm")

def emit_side(a, name):
    srd(a, 12, P_K, S_LEN * D * 2)
    srd(a, 20, P_V, S_LEN * D * 2)
    srd(a, 24, P_SHIFT, D * 4 * 2)
    srd(a, 28, P_GATEW, D * 2)
    a("s_sub_u32 s4, s4, 4")
    a("s_and_b32 s7, s2, 7")
    a("s_lshl_b32 s7, s7, 2")
    a("s_bfe_u32 s32, s2, 0x20003")
    a("s_add_u32 s7, s7, s32")
    a("s_lshr_b32 s32, s2, 5")
    a("v_cmp_le_u32 vcc, 28, v0")
    a("v_cmp_le_u32 s[34:35], 56, v0")
    a("s_nop 0")
    a("v_cndmask_b32 v2, 0, 1, vcc")
    a("v_cndmask_b32 v2, v2, 0, s[34:35]")
    a("v_cndmask_b32 v3, 0, 28, vcc")
    a("v_cndmask_b32 v3, v3, 56, s[34:35]")
    a("v_sub_u32 v3, v0, v3")
    a("s_lshl_b32 s33, s7, 6")
    a("s_lshl_b32 s62, s4, 4")
    a("s_add_u32 s33, s33, s62")
    a("v_lshlrev_b32 v4, 3, v2")
    a("v_add_u32 v4, s33, v4")
    a("v_subrev_u32 v5, 3, v4")
    a("v_mov_b32 v6, 896")
    a("v_mul_lo_u32 v5, v5, v6")
    a("s_mul_i32 s62, s32, 112")
    a("v_lshlrev_b32 v7, 2, v3")
    a("v_add_u32 v7, s62, v7")
    a("v_add_u32 v5, v5, v7")
    a("s_mul_i32 s63, s32, 56")
    a("v_lshlrev_b32 v8, 1, v3")
    a("v_add_u32 v8, s63, v8")
    a("v_lshlrev_b32 v8, 3, v8")
    a("buffer_load_dwordx4 v[12:15], v8, s[24:27], 0 offen")
    KR = 16
    for j in range(11):
        if j == 0: a(f"buffer_load_dword v{KR}, v5, s[12:15], 0 offen")
        else:
            a(f"v_add_u32 v9, {896*j}, v5")
            a(f"buffer_load_dword v{KR+j}, v9, s[12:15], 0 offen")
    VR = 28
    a(f"v_add_u32 v10, {896*3}, v5")
    for j in range(8):
        if j * 896 < 4096: a(f"buffer_load_dword v{VR+j}, v10, s[20:23], 0 offen offset:{896*j}")
        else:
            a(f"v_add_u32 v9, {896*j}, v10")
            a(f"buffer_load_dword v{VR+j}, v9, s[20:23], 0 offen")
    a("s_lshl_b32 s62, s6, 7")
    a("s_lshl_b32 s63, s5, 3")
    a("s_add_u32 s62, s62, s63")
    a("s_lshl_b32 s63, s4, 1")
    a("s_add_u32 s62, s62, s63")
    a("v_lshrrev_b32 v9, 5, v0")
    a("v_add_u32 v36, s62, v9")
    a("v_mul_u32_u24 v9, 896, v36")
    a("v_and_b32 v11, 31, v0")
    a("v_mul_u32_u24 v11, 28, v11")
    a("v_add_u32 v9, v9, v11")
    a("buffer_load_dwordx4 v[40:43], v9, s[8:11], 0 offen")
    a("buffer_load_dwordx3 v[44:46], v9, s[8:11], 0 offen offset:16")
    a("buffer_load_dwordx4 v[48:51], v11, s[28:31], 0 offen")
    a("buffer_load_dwordx3 v[52:54], v11, s[28:31], 0 offen offset:16")
    a("s_barrier")
    a("s_waitcnt vmcnt(4)")
    W = 56
    for c in range(2):
        for j in range(2):
            a(f"v_lshlrev_b32 v{W+4*c+2*j}, 16, v{12+2*c+j}")
            a(f"v_and_b32 v{W+4*c+2*j+1}, 0xffff0000, v{12+2*c+j}")
    for j in range(11):
        a(f"v_lshlrev_b32 v{64+j}, 16, v{KR+j}")
        a(f"v_and_b32 v{80+j}, 0xffff0000, v{KR+j}")
    for c in range(2):
        kb = 64 if c == 0 else 80
        for t in range(8):
            d = 96 + 8*c + t
            a(f"v_mul_f32 v{d}, v{W+4*c+3}, v{kb+t}")
            a(f"v_fmac_f32 v{d}, v{W+4*c+2}, v{kb+t+1}")
            a(f"v_fmac_f32 v{d}, v{W+4*c+1}, v{kb+t+2}")
            a(f"v_fmac_f32 v{d}, v{W+4*c+0}, v{kb+t+3}")
            if c == 0: a(f"v_lshlrev_b32 v9, 16, v{VR+t}")
            else:      a(f"v_and_b32 v9, 0xffff0000, v{VR+t}")
            a(f"v_mul_f32 v{d}, v{d}, v9")
    for c in range(2):
        for j in range(4):
            a(f"v_cvt_pk_bf16_f32 v{112+4*c+j}, v{96+8*c+7-2*j}, v{96+8*c+6-2*j}")
    a("v_mul_u32_u24 v9, 288, v3")
    a("s_lshl_b32 s63, s4, 5")
    a(f"s_sub_u32 s63, {LDS_T + 112}, s63")
    a("v_lshlrev_b32 v11, 4, v2")
    a("v_sub_u32 v9, v9, v11")
    a("v_add_u32 v9, s63, v9")
    a("v_cmp_gt_u32 vcc, 56, v0")
    a("s_and_saveexec_b64 s[34:35], vcc")
    a("ds_write_b128 v9, v[112:115]")
    a("ds_write_b128 v9, v[116:119] offset:144")
    a("s_mov_b64 exec, s[34:35]")
    a("s_waitcnt lgkmcnt(0)")
    a("s_barrier")
    a("s_mul_i32 s63, s4, 14")
    a("v_lshrrev_b32 v9, 3, v0")
    a("v_add_u32 v9, s63, v9")
    a("v_and_b32 v11, 7, v0")
    a("v_mul_u32_u24 v12, 144, v9")
    a("v_lshl_add_u32 v12, v11, 4, v12")
    a(f"v_add_u32 v12, {LDS_T}, v12")
    a("s_mul_i32 s33, s32, 56")
    a("v_add_u32 v9, s33, v9")
    a("v_lshlrev_b32 v9, 12, v9")
    a("v_lshl_add_u32 v9, v11, 4, v9")
    a("s_lshl_b32 s33, s7, 7")
    a(f"s_sub_u32 s33, {WS_UR + 2*1984}, s33")
    a("v_cmp_gt_u32 vcc, 56, v0")
    a("s_and_saveexec_b64 s[34:35], vcc")
    a("ds_read_b128 v[16:19], v12")
    a(f"ds_read_b128 v[20:23], v12 offset:{7*144}")
    a(f"v_add_u32 v11, {7*4096}, v9")
    a("s_waitcnt lgkmcnt(0)")
    a("buffer_store_dwordx4 v[16:19], v9, s[16:19], s33 offen sc1")
    a("buffer_store_dwordx4 v[20:23], v11, s[16:19], s33 offen sc1")
    a("s_mov_b64 exec, s[34:35]")
    a("s_waitcnt vmcnt(2)")
    a("v_mov_b32 v60, 0")
    for j in range(7):
        xr = 40 + j if j < 4 else 44 + (j - 4)
        wr = 48 + j if j < 4 else 52 + (j - 4)
        a(f"v_lshlrev_b32 v61, 16, v{xr}")
        a(f"v_and_b32 v62, 0xffff0000, v{xr}")
        a(f"v_lshlrev_b32 v63, 16, v{wr}")
        a(f"v_and_b32 v64, 0xffff0000, v{wr}")
        a("v_mul_f32 v61, v61, v63")
        a("v_mul_f32 v62, v62, v64")
        a("v_cvt_pk_bf16_f32 v61, v61, v62")
        a("v_lshlrev_b32 v62, 16, v61")
        a("v_and_b32 v61, 0xffff0000, v61")
        a("v_add_f32 v60, v60, v62")
        a("v_add_f32 v60, v60, v61")
    for sh in (1, 2, 4, 8):
        a("s_nop 1")
        a(f"v_add_f32_dpp v60, v60, v60 row_shr:{sh} row_mask:0xf bank_mask:0xf bound_ctrl:0")
    a("s_nop 1")
    a("v_add_f32_dpp v60, v60, v60 row_bcast:15 row_mask:0xa bank_mask:0xf")
    a("v_cvt_pk_bf16_f32 v61, v60, v60")
    a("v_lshlrev_b32 v61, 16, v61")
    a("v_mul_f32 v61, 0xbfb8aa3b, v61")
    a("v_exp_f32 v61, v61")
    a("s_nop 0")
    a("v_add_f32 v61, 1.0, v61")
    a("v_rcp_f32 v61, v61")
    a("s_nop 0")
    a("v_cvt_pk_bf16_f32 v61, v61, v61")
    a("v_lshlrev_b32 v61, 16, v61")
    a("v_lshlrev_b32 v62, 2, v36")
    a(f"s_mov_b32 s33, {WS_G}")
    a("v_and_b32 v63, 31, v0")
    a("v_cmp_eq_u32 vcc, 31, v63")
    a("s_and_saveexec_b64 s[34:35], vcc")
    a("buffer_store_dword v61, v62, s[16:19], s33 offen sc1")
    a("s_endpgm")
```

```python
from common import *
import os

RING = 0
RED = 131072
FLAG = RED + 16384
K2_LDS = FLAG + 64

VQ, VO, VS, VP, VK, VV = 8, 16, (32, 48), (64, 72), (80, 88), (96, 104)
V_L16, V_CUR, V_NXT = 1, 2, 3

def dma_chunk(a, sg, sl):
    a(f"s_mov_b32 m0, s{sl}")
    a("s_nop 0")
    for i in range(4):
        a(f"buffer_load_dwordx4 v{V_L16}, s[16:19], s{sg} offen offset:{1024*i} lds")

def attn_phase(a, n, with_chunk):
    p = n & 1
    S, Sn = VS[p], VS[1 - p]
    P, Pp = VP[p], VP[1 - p]
    Kn = VK[1 - p]; Kl = VK[p]
    Vp = VV[1 - p]; Vl = VV[p]
    a("s_waitcnt lgkmcnt(0)")
    if with_chunk: with_chunk()
    t2 = (n + 2) % 4; kaddr = V_NXT if (n % 4) >= 2 else V_CUR
    a(f"ds_read_b128 {vr(Kl,4)}, v{kaddr} offset:{t2*4096}")
    a(f"ds_read_b128 {vr(Kl+4,4)}, v{kaddr} offset:{t2*4096+1024}")
    t0 = n % 4
    a(f"ds_read_b128 {vr(Vl,4)}, v{V_CUR} offset:{t0*4096+2048}")
    a(f"ds_read_b128 {vr(Vl+4,4)}, v{V_CUR} offset:{t0*4096+3072}")
    mf = [f"v_mfma_f32_32x32x16_bf16 {vr(Sn,16)}, {vr(Kn,4)}, {vr(VQ,4)}, 0",
          f"v_mfma_f32_32x32x16_bf16 {vr(Sn,16)}, {vr(Kn+4,4)}, {vr(VQ+4,4)}, {vr(Sn,16)}",
          f"v_mfma_f32_32x32x16_bf16 {vr(VO,16)}, {vr(Vp,4)}, {vr(Pp,4)}, {vr(VO,16)}",
          f"v_mfma_f32_32x32x16_bf16 {vr(VO,16)}, {vr(Vp+4,4)}, {vr(Pp+4,4)}, {vr(VO,16)}"]
    for g in range(4):
        a(mf[g])
        for r in range(4): a(f"v_exp_f32 v{S+4*g+r}, v{S+4*g+r}")
        a(f"v_cvt_pk_bf16_f32 v{P+2*g}, v{S+4*g}, v{S+4*g+1}")
        a(f"v_cvt_pk_bf16_f32 v{P+2*g+1}, v{S+4*g+2}, v{S+4*g+3}")

def emit_attn_main(a, L):
    a.label(L("attn"))
    a("s_lshl_b32 s20, s5, 6")
    a("s_lshr_b32 s7, s4, 2")
    a("s_lshl_b32 s7, s7, 5")
    a("s_add_u32 s20, s20, s7")
    a("s_and_b32 s7, s4, 3")
    a("s_add_u32 s20, s20, s7")
    a("s_lshl_b32 s20, s20, 12")
    a(f"s_add_u32 s20, s20, {WS_KVF}")
    a("s_lshl_b32 s21, s4, 12")
    for c in range(3):
        dma_chunk(a, 20, 21)
        a("s_add_u32 s20, s20, 16384")
        a("s_add_u32 s21, s21, 32768")
    a("s_mov_b32 s22, 3")
    a("s_lshr_b32 s7, s4, 2")
    a("s_lshl_b32 s7, s7, 14")
    a(f"v_add_u32 v{V_CUR}, s7, v{V_L16}")
    a(f"v_add_u32 v{V_NXT}, 32768, v{V_CUR}")
    for r in range(16): a(f"v_mov_b32 v{VO+r}, 0")
    for r in range(8):
        a(f"v_mov_b32 v{VP[1]+r}, 0")
        a(f"v_mov_b32 v{VV[1]+r}, 0")
    a("s_waitcnt vmcnt(8)")
    a("s_barrier")
    a(f"ds_read_b128 {vr(VK[0],4)}, v{V_CUR}")
    a(f"ds_read_b128 {vr(VK[0]+4,4)}, v{V_CUR} offset:1024")
    a(f"ds_read_b128 {vr(VK[1],4)}, v{V_CUR} offset:4096")
    a(f"ds_read_b128 {vr(VK[1]+4,4)}, v{V_CUR} offset:5120")
    a("s_waitcnt lgkmcnt(2)")
    a(f"v_mfma_f32_32x32x16_bf16 {vr(VS[0],16)}, {vr(VK[0],4)}, {vr(VQ,4)}, 0")
    a(f"v_mfma_f32_32x32x16_bf16 {vr(VS[0],16)}, {vr(VK[0]+4,4)}, {vr(VQ+4,4)}, {vr(VS[0],16)}")
    a("s_mov_b32 s23, 8")
    a("s_nop 5")
    a.label(L("aloop"))
    def chunk():
        a("s_waitcnt vmcnt(4)")
        a("s_barrier")
        a("s_cmp_ge_u32 s22, 8")
        a("s_cselect_b32 s24, 0x40000000, 0")
        a("s_add_u32 s24, s24, s20")
        a("s_and_b32 s21, s21, 0x1ffff")
        dma_chunk(a, 24, 21)
        a("s_add_u32 s20, s20, 16384")
        a("s_add_u32 s21, s21, 32768")
        a("s_add_u32 s22, s22, 1")
    for n in range(4):
        attn_phase(a, n, chunk if n == 2 else None)
    a(f"v_mov_b32 v{V_CUR}, v{V_NXT}")
    a(f"v_add_u32 v{V_NXT}, 32768, v{V_NXT}")
    a(f"v_and_b32 v{V_NXT}, 0x1ffff, v{V_NXT}")
    a("s_sub_u32 s23, s23, 1")
    a("s_cmp_lg_u32 s23, 0")
    a(f"s_cbranch_scc1 {L('aloop')}")
    a("s_waitcnt lgkmcnt(0)")
    a(f"v_mfma_f32_32x32x16_bf16 {vr(VO,16)}, {vr(VV[1],4)}, {vr(VP[1],4)}, {vr(VO,16)}")
    a(f"v_mfma_f32_32x32x16_bf16 {vr(VO,16)}, {vr(VV[1]+4,4)}, {vr(VP[1]+4,4)}, {vr(VO,16)}")

def emit_attn_finish(a, L, skip_check_reg=70):
    a("s_and_b32 s7, s4, 3")
    a("s_lshl_b32 s7, s7, 12")
    a(f"s_add_u32 s7, s7, {RED}")
    a(f"v_add_u32 v4, s7, v{V_L16}")
    a("s_cmp_lt_u32 s4, 4")
    a(f"s_cbranch_scc1 {L('fin_lo')}")
    a("s_nop 7")
    for g in range(4):
        a(f"ds_write_b128 v4, {vr(VO+4*g,4)} offset:{1024*g}")
    a("s_waitcnt lgkmcnt(0)")
    a("s_barrier")
    a(f"s_branch {L('fin_join')}")
    a.label(L("fin_lo"))
    a("s_barrier")
    for g in range(4):
        a(f"ds_read_b128 {vr(32+4*g,4)}, v4 offset:{1024*g}")
    a("s_lshl_b32 s7, s6, 2")
    a("s_add_u32 s7, s7, s4")
    a("s_lshl_b32 s7, s7, 4")
    a("s_add_u32 s7, s7, s5")
    a("s_lshl_b32 s7, s7, 11")
    a(f"s_add_u32 s7, s7, {WS_OF}")
    a("s_waitcnt lgkmcnt(0)")
    for r in range(16): a(f"v_add_f32 v{VO+r}, v{VO+r}, v{32+r}")
    a(f"v_mov_b32 v48, v{VO+12}")
    a(f"v_mov_b32 v49, v{VO+12}")
    a("s_nop 1")
    a("v_permlane32_swap_b32 v48, v49")
    a("s_nop 1")
    a("v_mov_b32 v50, 0x33800000")
    a("v_mov_b32 v51, 0x53800000")
    a("v_cmp_ge_f32 vcc, v49, v50")
    a("v_cmp_le_f32 s[24:25], v49, v51")
    a("v_rcp_f32 v49, v49")
    a("s_and_b64 vcc, vcc, s[24:25]")
    a("v_mov_b32 v52, 0")
    for r in range(0, 16, 2):
        a(f"v_max3_f32 v52, v52, abs(v{VO+r}), abs(v{VO+r+1})")
    a("v_mov_b32 v51, 0x7f000000")
    a("v_cmp_le_f32 s[24:25], v52, v51")
    a("s_and_b64 vcc, vcc, s[24:25]")
    for r in range(16): a(f"v_mul_f32 v{VO+r}, v{VO+r}, v49")
    a("v_cmp_gt_u32 s[26:27], 32, v0")
    a("s_nop 1")
    for r in range(12, 16): a(f"v_cndmask_b32 v{VO+r}, 0, v{VO+r}, s[26:27]")
    for j in range(8): a(f"v_cvt_pk_bf16_f32 v{32+j}, v{VO+2*j}, v{VO+2*j+1}")
    a(f"buffer_store_dwordx4 v[32:35], v{V_L16}, s[16:19], s7 offen sc1")
    a(f"buffer_store_dwordx4 v[36:39], v{V_L16}, s[16:19], s7 offen offset:1024 sc1")
    a("s_cmp_eq_u64 vcc, exec")
    a(f"s_cbranch_scc1 {L('fin_join')}")
    a(f"v_mov_b32 v50, {FLAG}")
    a("v_mov_b32 v51, 1")
    a("ds_write_b32 v50, v51")
    a("s_waitcnt lgkmcnt(0)")
    a.label(L("fin_join"))
    a("s_barrier")
    a(f"v_mov_b32 v50, {FLAG}")
    a("ds_read_b32 v51, v50")
    a("s_waitcnt lgkmcnt(0)")
    a("v_readfirstlane_b32 s7, v51")

def emit_fallback(a, L):
    a.label(L("fallback"))
    a("s_mov_b32 s70, 1")
    a("s_lshl_b32 s20, s5, 6")
    a("s_lshr_b32 s7, s4, 2")
    a("s_lshl_b32 s7, s7, 5")
    a("s_add_u32 s20, s20, s7")
    a("s_and_b32 s7, s4, 3")
    a("s_add_u32 s20, s20, s7")
    a("s_lshl_b32 s20, s20, 12")
    a(f"s_add_u32 s20, s20, {WS_KVF}")
    a("s_lshl_b32 s21, s4, 12")
    a("s_lshr_b32 s7, s4, 2")
    a("s_lshl_b32 s7, s7, 14")
    a(f"v_add_u32 v{V_CUR}, s7, v{V_L16}")
    a("v_mov_b32 v4, 0xff800000")
    a("s_waitcnt vmcnt(0)")
    a("s_mov_b32 s23, 8")
    a.label(L("mloop"))
    a("s_barrier")
    dma_chunk(a, 20, 21)
    a("s_add_u32 s20, s20, 16384")
    a("s_waitcnt vmcnt(0)")
    a("s_barrier")
    for t in range(4):
        a(f"ds_read_b128 {vr(VK[0],4)}, v{V_CUR} offset:{t*4096}")
        a(f"ds_read_b128 {vr(VK[0]+4,4)}, v{V_CUR} offset:{t*4096+1024}")
        a("s_waitcnt lgkmcnt(0)")
        a(f"v_mfma_f32_32x32x16_bf16 {vr(VS[0],16)}, {vr(VK[0],4)}, {vr(VQ,4)}, 0")
        a(f"v_mfma_f32_32x32x16_bf16 {vr(VS[0],16)}, {vr(VK[0]+4,4)}, {vr(VQ+4,4)}, {vr(VS[0],16)}")
        a("s_nop 11")
        for r in range(0, 16, 2):
            a(f"v_max3_f32 v4, v4, v{VS[0]+r}, v{VS[0]+r+1}")
    a("s_sub_u32 s23, s23, 1")
    a("s_cmp_lg_u32 s23, 0")
    a(f"s_cbranch_scc1 {L('mloop')}")
    a("v_mov_b32 v5, v4")
    a("s_nop 1")
    a("v_permlane32_swap_b32 v4, v5")
    a("s_nop 1")
    a("v_max_f32 v4, v4, v5")
    a("s_lshl_b32 s7, s4, 8")
    a(f"s_add_u32 s7, s7, {RED}")
    a("v_lshlrev_b32 v5, 2, v0")
    a("v_add_u32 v6, s7, v5")
    a("ds_write_b32 v6, v4")
    a("s_xor_b32 s7, s4, 4")
    a("s_lshl_b32 s7, s7, 8")
    a(f"s_add_u32 s7, s7, {RED}")
    a("v_add_u32 v6, s7, v5")
    a("s_waitcnt lgkmcnt(0)")
    a("s_barrier")
    a("ds_read_b32 v5, v6")
    a(f"v_mov_b32 v50, {FLAG}")
    a("v_mov_b32 v51, 0")
    a("s_waitcnt lgkmcnt(0)")
    a("v_max_f32 v4, v4, v5")
    a("s_barrier")
    a("ds_write_b32 v50, v51")
    a("v_and_b32 v5, 0xffff0000, v4")
    a("v_sub_f32 v6, v4, v5")
    a("v_and_b32 v7, 0xffff0000, v6")
    a("v_sub_f32 v6, v6, v7")
    a("v_xor_b32 v5, 0x80000000, v5")
    a("v_xor_b32 v7, 0x80000000, v7")
    a("v_xor_b32 v6, 0x80000000, v6")
    a("v_lshrrev_b32 v5, 16, v5")
    a("v_or_b32 v5, v5, v7")
    a("v_lshrrev_b32 v6, 16, v6")
    a("v_cmp_gt_u32 vcc, 32, v0")
    a("s_nop 1")
    a(f"v_cndmask_b32 v{VQ+6}, v5, v{VQ+6}, vcc")
    a(f"v_cndmask_b32 v{VQ+7}, v6, v{VQ+7}, vcc")
    a("s_waitcnt lgkmcnt(0)")
    a("s_barrier")
    a(f"s_branch {L('attn')}")

def emit_k2(a, name="k2_kernel", conv=True):
    kernel_head(a, name)
    L = lambda s: f"{name}_{s}"
    a("s_cmp_ge_u32 s2, 256")
    a(f"s_cbranch_scc1 {L('end')}")
    load_kernargs(a)
    a("v_lshrrev_b32 v1, 6, v0")
    a("v_and_b32 v0, 63, v0")
    a("v_readfirstlane_b32 s4, v1")
    a("s_and_b32 s5, s2, 7")
    a("s_lshl_b32 s5, s5, 1")
    a("s_bfe_u32 s6, s2, 0x10003")
    a("s_add_u32 s5, s5, s6")
    a("s_lshr_b32 s6, s2, 4")
    a(f"v_lshlrev_b32 v{V_L16}, 4, v0")
    a("s_mov_b32 s70, 0")
    a(f"v_mov_b32 v50, {FLAG}")
    a("v_mov_b32 v51, 0")
    a("ds_write_b32 v50, v51")
    a("s_waitcnt lgkmcnt(0)")
    srd(a, 16, P_WS, WS_SIZE)
    a("s_lshl_b32 s7, s5, 6")
    a("s_lshl_b32 s8, s6, 2")
    a("s_add_u32 s7, s7, s8")
    a("s_and_b32 s8, s4, 3")
    a("s_add_u32 s7, s7, s8")
    a("s_lshl_b32 s7, s7, 11")
    a(f"s_add_u32 s7, s7, {WS_QF}")
    a(f"buffer_load_dwordx4 {vr(VQ,4)}, v{V_L16}, s[16:19], s7 offen")
    a(f"buffer_load_dwordx4 {vr(VQ+4,4)}, v{V_L16}, s[16:19], s7 offen offset:1024")
    if conv:
        import conv as cv
        cv.emit_conv(a, L)
    emit_attn_main(a, L)
    emit_attn_finish(a, L)
    a("s_cmp_eq_u32 s7, 0")
    a(f"s_cbranch_scc1 {L('end')}")
    a("s_cmp_eq_u32 s70, 1")
    a(f"s_cbranch_scc1 {L('end')}")
    emit_fallback(a, L)
    a.label(L("end"))
    a("s_endpgm")
```

```python
from common import *
IMG = 452 * 64
RED3 = 2 * IMG
K3_LDS = RED3 + 16384

def emit_k3(a, name="k3_kernel"):
    kernel_head(a, name)
    L = lambda s: f"{name}_{s}"
    a("s_cmp_ge_u32 s2, 256")
    a(f"s_cbranch_scc1 {L('end')}")
    load_kernargs(a)
    a("v_lshrrev_b32 v1, 6, v0")
    a("v_and_b32 v0, 63, v0")
    a("v_readfirstlane_b32 s4, v1")
    a("s_and_b32 s5, s2, 7")
    a("s_lshl_b32 s5, s5, 2")
    a("s_bfe_u32 s6, s2, 0x20003")
    a("s_add_u32 s5, s5, s6")
    a("s_lshr_b32 s6, s2, 5")
    a("s_and_b32 s20, s4, 1")
    a("s_bfe_u32 s21, s4, 0x10001")
    a("s_lshr_b32 s22, s4, 2")
    a("s_waitcnt lgkmcnt(0)")
    srd(a, 8, P_WO, D * D * 2)
    srd(a, 12, P_X, S_LEN * D * 2)
    srd(a, 16, P_WS, WS_SIZE)
    srd(a, 24, P_OUT, S_LEN * D * 2)
    a("v_lshrrev_b32 v2, 2, v0")
    a("v_mul_u32_u24 v2, 896, v2")
    a("v_and_b32 v3, 3, v0")
    a("v_lshl_add_u32 v2, v3, 4, v2")
    a("s_and_b32 s7, s4, 3")
    a("s_mul_i32 s7, s7, 7")
    a("s_mul_i32 s28, s7, 14336")
    a("s_mul_i32 s29, s6, 112")
    a("s_add_u32 s28, s28, s29")
    a("s_lshl_b32 s29, s22, 6")
    a("s_add_u32 s28, s28, s29")
    a("s_lshl_b32 s29, s7, 10")
    a(f"s_mul_i32 s30, s22, {IMG}")
    a("s_add_u32 s29, s29, s30")
    for j in range(7):
        a(f"s_add_u32 m0, s29, {1024*j}")
        a(f"s_add_u32 s30, s28, {14336*j}")
        a("buffer_load_dwordx4 v2, s[8:11], s30 offen lds")
    a("v_lshlrev_b32 v1, 4, v0")
    a("s_lshl_b32 s7, s5, 1")
    a("s_add_u32 s7, s7, s20")
    a("s_lshl_b32 s28, s7, 15")
    a("s_lshl_b32 s29, s22, 14")
    a("s_add_u32 s28, s28, s29")
    a(f"s_add_u32 s28, s28, {WS_OF}")
    OB = 64
    for f in range(16):
        if f % 4 == 0 and f > 0: a("s_add_u32 s28, s28, 4096")
        a(f"buffer_load_dwordx4 {vr(OB+4*f,4)}, v1, s[16:19], s28 offen offset:{(f%4)*1024}")
    a("v_and_b32 v3, 31, v0")
    a("s_lshl_b32 s29, s7, 5")
    a("v_add_u32 v3, s29, v3")
    a("v_lshrrev_b32 v4, 5, v0")
    a("s_mul_i32 s29, s6, 56")
    a("s_lshl_b32 s30, s21, 5")
    a("s_add_u32 s29, s29, s30")
    a("s_lshl_b32 s30, s22, 3")
    a("s_add_u32 s29, s29, s30")
    a("v_lshlrev_b32 v5, 4, v4")
    a("v_add_u32 v5, s29, v5")
    a("s_lshl_b32 s29, s21, 5")
    a("s_add_u32 s29, s29, s30")
    a("v_lshlrev_b32 v6, 4, v4")
    a("v_add_u32 v6, s29, v6")
    a("v_cmp_gt_u32 s[32:33], 56, v6")
    a("v_mul_u32_u24 v6, 896, v3")
    a("v_lshl_add_u32 v6, v5, 1, v6")
    a("v_lshlrev_b32 v7, 12, v5")
    a("v_lshl_add_u32 v7, v3, 1, v7")
    a("v_lshlrev_b32 v8, 2, v3")
    for j in range(8): a(f"v_mov_b32 v{40+j}, 0")
    a("buffer_load_dwordx4 v[36:39], v6, s[12:15], 0 offen")
    a(f"s_mov_b32 s29, {WS_Y2}")
    for j in range(8):
        if j: a(f"s_add_u32 s29, s29, 4096")
        a(f"buffer_load_short_d16_hi v{40+j}, v7, s[16:19], s29 offen")
    a(f"s_mov_b32 s29, {WS_G}")
    a("buffer_load_dword v48, v8, s[16:19], s29 offen")
    a("v_lshrrev_b32 v9, 4, v0")
    a(f"v_mul_u32_u24 v9, {IMG}, v9")
    a("v_and_b32 v10, 15, v0")
    a("v_lshl_add_u32 v9, v10, 4, v9")
    a("v_mov_b32 v12, 0\nv_mov_b32 v13, 0\nv_mov_b32 v14, 0\nv_mov_b32 v15, 0")
    a("v_cmp_gt_u32 vcc, 32, v0")
    a("s_and_saveexec_b64 s[34:35], vcc")
    a(f"ds_write_b128 v9, v[12:15] offset:{448*64}")
    a("s_mov_b64 exec, s[34:35]")
    a("v_bfe_u32 v9, v0, 2, 2")
    a("v_lshl_add_u32 v9, v4, 2, v9")
    a("v_lshlrev_b32 v9, 6, v9")
    a("v_and_b32 v10, 1, v0")
    a("v_lshl_add_u32 v9, v10, 5, v9")
    a("v_bfe_u32 v10, v0, 1, 1")
    a("v_lshl_add_u32 v9, v10, 3, v9")
    a("v_bfe_u32 v10, v0, 4, 1")
    a("v_lshl_add_u32 v9, v10, 4, v9")
    a(f"s_mul_i32 s29, s21, {IMG}")
    a(f"s_mul_i32 s30, s22, {8*28*64}")
    a("s_add_u32 s29, s29, s30")
    a("v_add_u32 v9, s29, v9")
    AC = 16
    for r in range(16): a(f"v_mov_b32 v{AC+r}, 0")
    a("s_waitcnt vmcnt(26) lgkmcnt(0)")
    a("s_barrier")
    AB = [48 + 0, 56]
    AB = [52, 128 - 0]
    A0, A1 = 52, 10
    def areads(hp, regs):
        for mf in range(2):
            for half in range(2):
                a(f"ds_read_b64_tr_b16 {vr(regs[mf]+2*half,2)}, v9 offset:{(28*hp + 16*mf + 8*half)*64}")
    bufs = [(52, 56), (60, 32)]
    areads(0, bufs[0])
    for hp in range(8):
        if hp < 7: areads(hp + 1, bufs[(hp + 1) & 1])
        a(f"s_waitcnt vmcnt({10 + 2*(7-hp)}) lgkmcnt({4 if hp < 7 else 0})")
        for mf in range(2):
            a(f"v_mfma_f32_32x32x16_bf16 {vr(AC,16)}, {vr(bufs[hp&1][mf],4)}, {vr(OB+4*(2*hp+mf),4)}, {vr(AC,16)}")
    a("s_lshl_b32 s29, s4, 11")
    a(f"s_add_u32 s29, s29, {RED3}")
    a("v_add_u32 v10, s29, v1")
    a("s_xor_b32 s29, s4, 4")
    a("s_lshl_b32 s29, s29, 11")
    a(f"s_add_u32 s29, s29, {RED3}")
    a("v_add_u32 v11, s29, v1")
    a("s_cmp_eq_u32 s22, 1")
    a("s_nop 5")
    a(f"s_cbranch_scc1 {L('kh1')}")
    a(f"ds_write_b128 v10, v[{AC+8}:{AC+11}]")
    a(f"ds_write_b128 v10, v[{AC+12}:{AC+15}] offset:1024")
    a(f"s_branch {L('khj')}")
    a.label(L("kh1"))
    a(f"ds_write_b128 v10, v[{AC}:{AC+3}]")
    a(f"ds_write_b128 v10, v[{AC+4}:{AC+7}] offset:1024")
    for r in range(8): a(f"v_mov_b32 v{AC+r}, v{AC+8+r}")
    a.label(L("khj"))
    a("s_waitcnt lgkmcnt(0)")
    a("s_barrier")
    a("ds_read_b128 v[64:67], v11")
    a("ds_read_b128 v[68:71], v11 offset:1024")
    a("s_waitcnt vmcnt(0)")
    a("v_sub_f32 v49, 1.0, v48")
    a("v_cvt_pk_bf16_f32 v49, v49, v49")
    a("v_and_b32 v49, 0xffff0000, v49")
    for j in range(8):
        if j % 2 == 0: a(f"v_lshlrev_b32 v50, 16, v{36+j//2}")
        else:          a(f"v_and_b32 v50, 0xffff0000, v{36+j//2}")
        a(f"v_mul_f32 v{40+j}, v{40+j}, v50")
        a(f"v_mul_f32 v{40+j}, v{40+j}, v49")
    a("s_waitcnt lgkmcnt(0)")
    for j in range(8):
        a(f"v_add_f32 v{AC+j}, v{AC+j}, v{64+j}")
        a(f"v_fmac_f32 v{40+j}, v48, v{AC+j}")
    for j in range(4):
        a(f"v_cvt_pk_bf16_f32 v{72+j}, v{40+2*j}, v{41+2*j}")
    a("s_and_b64 exec, exec, s[32:33]")
    a(f"s_cbranch_execz {L('end')}")
    a("buffer_store_dwordx4 v[72:75], v6, s[24:27], 0 offen")
    a.label(L("end"))
    a("s_endpgm")
```

```python
import sys
sys.path.insert(0, 'gen')
from common import *
HEADER = open('gated_mix__softmax_full_mha__ssm_conv_h3__prompt.s.ref').read().split("; Override launch")[0]

def build(kernels, out):
    a = Asm()
    done = set()
    for (name, fn, grid, block, lds, vg, sg) in kernels:
        if name in done: continue
        done.add(name)
        fn(a, name)
    probs = check_hazards(a.lines)
    for p in probs: print("HAZARD", p)
    txt = HEADER
    for (name, fn, grid, block, lds, vg, sg) in kernels:
        txt += f"; @launch kernel={name} grid=({grid},1,1) block=({block},1,1) lds={lds}\n"
    txt += '.amdgcn_target "amdgcn-amd-amdhsa--gfx950"\n.text\n'
    txt += a.text() + "\n"
    txt += '.section .rodata,"a"\n'
    seen = set()
    for (name, fn, grid, block, lds, vg, sg) in kernels:
        if name in seen: continue
        seen.add(name)
        txt += descriptor(name, vg, sg) + "\n"
    open(out, "w").write(txt)
    return len(probs)

if __name__ == "__main__":
    import k1, k2
    what = sys.argv[1]
    K1 = ("k1_kernel", k1.emit_k1, 256, 512, k1.K1_LDS, 128, 96)
    if what == "k1": build([K1], "k1test.s")
    if what == "k12a":
        build([K1, ("k2_kernel", lambda a, n: k2.emit_k2(a, n, conv=False), 256, 512, k2.K2_LDS, 128, 96)], "k12a.s")
    if what == "k12":
        build([K1, ("k2_kernel", k2.emit_k2, 256, 512, 160*1024, 128, 96)], "k12.s")
    if what == "all":
        import k3
        build([K1, ("k2_kernel", k2.emit_k2, 256, 512, 160*1024, 128, 96),
               ("k3_kernel", k3.emit_k3, 256, 512, k3.K3_LDS, 128, 96)], "all.s")
```
